```python
import torch

def _softmax(x, axis=-1):
    return torch.softmax(x, dim=axis)

def _gelu(x):
    return torch.nn.functional.gelu(x, approximate='tanh')

def _silu(x):
    return torch.nn.functional.silu(x)

def _sigmoid(x):
    return torch.sigmoid(x)

def _layernorm(x, axis=-1, eps=1e-05):
    m = x.mean(dim=axis, keepdim=True)
    v = x.var(dim=axis, keepdim=True, unbiased=False)
    return (x - m) / torch.sqrt(v + eps)

def _scatter_add(tgt, idx, src, axis=0):
    return tgt.clone().index_add_(axis, idx, src)

def _segment_sum(src, seg, n):
    out = torch.zeros((n,) + src.shape[1:], dtype=src.dtype)
    return out.index_add_(0, seg, src)

def _pad(x, pw):
    flat = tuple((v for pair in reversed(pw) for v in pair))
    return torch.nn.functional.pad(x, flat)
kernel_name = 'gather_scatter__tensor_product_equiv_equiformer__graph'

def setup_inputs():

    _w = lambda a: (lambda t: t.to(torch.bfloat16) if t.is_floating_point() else t)(torch.as_tensor(a))
    N, deg, C, De = (50000, 16, 64, max(16, 1))
    E = N * deg
    src = (lambda lo, hi, *s: torch.randint(lo, hi, s))(0, N, E).to(torch.int64)
    dst = (lambda lo, hi, *s: torch.randint(lo, hi, s))(0, N, E).to(torch.int64)
    rvec = (lambda *s: torch.randn(*s, dtype=torch.bfloat16) * 0.05)(E, 3).to(float)
    rn = (torch.linalg.norm(rvec, dim=-1, keepdim=True) + 1e-06).to(float)
    rhat = (rvec / rn).to(float)
    eps = torch.zeros((3, 3, 3), dtype=float)
    eps[0, 1, 2] = eps[1, 2, 0] = eps[2, 0, 1] = 1.0
    eps[0, 2, 1] = eps[2, 1, 0] = eps[1, 0, 2] = -1.0
    return {'x': _w((lambda *s: torch.randn(*s, dtype=torch.bfloat16) * 0.2)(N, 4 * C).to(float)), 'rhat': _w(rhat), 'e_attr': _w((lambda *s: torch.randn(*s, dtype=torch.bfloat16) * 0.2)(E, De).to(float)), 'src': _w(src), 'dst': _w(dst), 'w_rad': _w((lambda *s: torch.randn(*s, dtype=torch.bfloat16) * 0.2)(De, 5 * C).to(float)), 'w_si0': _w((lambda *s: torch.randn(*s, dtype=torch.bfloat16) * 0.2)(2 * C, C).to(float)), 'w_si1': _w((lambda *s: torch.randn(*s, dtype=torch.bfloat16) * 0.05)(3 * C, C).to(float)), 'cg_eps': _w(eps)}

def reference(x, rhat, e_attr, src, dst, w_rad, w_si0, w_si1, cg_eps):
    N = x.shape[0]
    C = w_si0.shape[1]
    E = rhat.shape[0]
    x0 = x[:, :C].clone()
    x1 = x[:, C:].reshape(N, 3, C)
    R = (e_attr @ w_rad).reshape(E, 5, C)
    f0 = x0[src]
    f1 = x1[src]
    Y1 = rhat
    p00_0 = f0 * R[:, 0, :]
    p11_0 = torch.einsum('ejc,ej->ec', f1, Y1) * R[:, 1, :]
    p01_1 = torch.einsum('ec,ej->ejc', f0, Y1) * R[:, 2, :][:, None, :]
    p10_1 = f1 * R[:, 3, :][:, None, :]
    p11_1 = torch.einsum('ijk,ekc,ej->eic', cg_eps, f1, Y1) * R[:, 4, :][:, None, :]
    m0 = torch.concatenate([p00_0, p11_0], axis=-1) @ w_si0
    m1 = torch.einsum('ejp,pc->ejc', torch.concatenate([p01_1, p10_1, p11_1], axis=-1), w_si1)
    agg0 = _segment_sum(m0, dst, N)
    agg1 = _segment_sum(m1.reshape(E, 3 * C), dst, N).reshape(N, 3, C)
    gate = _sigmoid(agg0)
    out1 = agg1 * gate[:, None, :]
    return torch.concatenate([agg0, out1.reshape(N, 3 * C)], axis=-1)
```

```python
class Asm:
    def __init__(self):
        self.lines = []
        self._uid = 0
    def e(self, s=''):
        for l in s.split('\n'):
            l = l.strip()
            if l:
                self.lines.append('    ' + l)
    def c(self, s):
        self.lines.append('    ; ' + s)
    def label(self, l):
        self.lines.append(l + ':')
    def raw(self, s):
        self.lines.append(s)
    def uid(self, p='L'):
        self._uid += 1
        return '%s_%d' % (p, self._uid)
    def text(self):
        return '\n'.join(self.lines) + '\n'

class Regs:
    def __init__(self, kind, start=0, limit=256):
        self.kind = kind; self.next = start; self.limit = limit; self.names = {}; self.hi = start
    def alloc(self, name, n=1, align=1):
        if n > 1 and align == 1:
            align = 2
        b = (self.next + align - 1) // align * align
        self.next = b + n
        assert self.next <= self.limit, (name, self.next)
        self.hi = max(self.hi, self.next)
        self.names[name] = (b, n)
        return b
    def mark(self):
        return self.next
    def release(self, m):
        self.next = m

def v(i, n=1):
    return 'v%d' % i if n == 1 else 'v[%d:%d]' % (i, i + n - 1)
def s(i, n=1):
    return 's%d' % i if n == 1 else 's[%d:%d]' % (i, i + n - 1)
def a(i, n=1):
    return 'a%d' % i if n == 1 else 'a[%d:%d]' % (i, i + n - 1)
```

```python
import sys, argparse
from asmlib import *

N = 50000; E = 800000; CH = 3200; NCH = 250; NB = 256
REC = 0; TAB = 0xA00000; WFR = 0xB00000; WS_SIZE = 0xB10000
MAGIC = 21990233
for d in range(N):
    assert (d * MAGIC) >> 32 == (d * 16) // 3125
SRD3 = 0x00020000

def dpp_scan(A, r):
    for sh in (1, 2, 4, 8):
        A.e('s_nop 1')
        A.e('v_add_u32_dpp %s, %s, %s row_shr:%d row_mask:0xf bank_mask:0xf' % (v(r), v(r), v(r), sh))
    A.e('s_nop 1')
    A.e('v_add_u32_dpp %s, %s, %s row_bcast:15 row_mask:0xa bank_mask:0xf' % (v(r), v(r), v(r)))
    A.e('s_nop 1')
    A.e('v_add_u32_dpp %s, %s, %s row_bcast:31 row_mask:0xc bank_mask:0xf' % (v(r), v(r), v(r)))

def gen_prep(A, opt):
    K = 'prep_kernel'
    LH, LS, LI = 0, 1024, 2048
    A.raw('.p2align 8')
    A.raw('.type %s,@function' % K)
    A.label(K)
    A.e('''
    s_cmp_ge_u32 s2, 254
    s_cbranch_scc1 P_END
    s_load_dwordx2 s[8:9], s[0:1], 32
    s_load_dwordx2 s[12:13], s[0:1], 24
    s_load_dwordx2 s[16:17], s[0:1], 8
    s_load_dwordx2 s[20:21], s[0:1], 88
    s_load_dwordx2 s[24:25], s[0:1], 40
    s_load_dwordx2 s[28:29], s[0:1], 48
    s_load_dwordx2 s[32:33], s[0:1], 56
    s_mov_b32 s10, %d
    s_mov_b32 s11, 0x20000
    s_mov_b32 s14, %d
    s_mov_b32 s15, 0x20000
    s_mov_b32 s18, %d
    s_mov_b32 s19, 0x20000
    s_mov_b32 s22, %d
    s_mov_b32 s23, 0x20000
    s_mov_b32 s26, 10240
    s_mov_b32 s27, 0x20000
    s_mov_b32 s30, 16384
    s_mov_b32 s31, 0x20000
    s_mov_b32 s34, 24576
    s_mov_b32 s35, 0x20000
    s_waitcnt lgkmcnt(0)
    s_cmp_ge_u32 s2, %d
    s_cbranch_scc1 P_WEIGHTS
    ''' % (E * 4, E * 4, E * 6, WS_SIZE, NCH))
    nt = ' nt' if opt.k1nt else ''
    A.e('''
    v_cmp_gt_u32 vcc, 0x100, v0
    s_and_saveexec_b64 s[40:41], vcc
    s_cbranch_execz P_L1
    v_lshlrev_b32 v1, 2, v0
    v_mov_b32 v2, 0
    ds_write_b32 v1, v2
    ''')
    A.label('P_L1')
    A.e('''
    s_mov_b64 exec, s[40:41]
    v_cmp_gt_u32 vcc, 0x320, v0
    s_mov_b64 s[44:45], vcc
    s_and_saveexec_b64 s[42:43], vcc
    s_cbranch_execz P_L2
    s_mul_i32 s3, s2, %d
    s_mul_i32 s4, s2, %d
    v_lshl_add_u32 v1, v0, 4, s3
    v_mul_u32_u24 v2, 24, v0
    v_add_u32 v2, s4, v2
    buffer_load_dwordx4 v[4:7], v1, s[8:11], 0 offen%s
    buffer_load_dwordx4 v[8:11], v1, s[12:15], 0 offen%s
    buffer_load_dwordx4 v[12:15], v2, s[16:19], 0 offen%s
    buffer_load_dwordx2 v[16:17], v2, s[16:19], 0 offen offset:16%s
    ''' % (CH * 4, CH * 6, nt, nt, nt, nt))
    A.label('P_L2')
    A.e('''
    s_mov_b64 exec, s[42:43]
    s_waitcnt lgkmcnt(0)
    s_barrier
    s_mov_b64 exec, s[44:45]
    s_cbranch_execz P_L3
    s_mov_b32 s5, %d
    s_movk_i32 s6, 3125
    s_mul_i32 s7, s2, %d
    v_lshl_add_u32 v3, v0, 2, s7
    v_mov_b32 v38, 1
    s_waitcnt vmcnt(3)
    ''' % (MAGIC, CH))
    vB, vRk, vW0, vW1, vW2 = 18, 22, 26, 30, 34
    for i in range(4):
        A.e('v_mul_hi_u32 %s, %s, s5' % (v(vB + i), v(4 + i)))
    for i in range(4):
        A.e('v_lshlrev_b32 %s, 2, %s' % (v(40 + i), v(vB + i)))
    for i in range(4):
        A.e('ds_add_rtn_u32 %s, %s, %s' % (v(vRk + i), v(40 + i), v(38)))
    for i in range(4):
        A.e('v_mad_u32_u24 %s, %s, s6, 15' % (v(44), v(vB + i)))
        A.e('v_lshrrev_b32 %s, 4, %s' % (v(44), v(44)))
        A.e('v_sub_u32 %s, %s, %s' % (v(44), v(4 + i), v(44)))
        A.e('v_add_u32 %s, %d, v3' % (v(45), i))
        A.e('v_lshl_or_b32 %s, %s, 20, %s' % (v(vW2 + i), v(44), v(45)))
    A.e('s_waitcnt vmcnt(0)')
    A.e('''
    v_mov_b32 v26, v12
    v_and_b32 v44, 0xffff, v13
    v_lshl_or_b32 v30, v8, 16, v44
    v_alignbit_b32 v27, v14, v13, 16
    v_alignbit_b32 v31, v9, v14, 16
    v_mov_b32 v28, v15
    v_and_b32 v44, 0xffff, v16
    v_lshl_or_b32 v32, v10, 16, v44
    v_alignbit_b32 v29, v17, v16, 16
    v_alignbit_b32 v33, v11, v17, 16
    ''')
    A.label('P_L3')
    A.e('''
    s_mov_b64 exec, -1
    s_waitcnt lgkmcnt(0)
    s_barrier
    v_cmp_gt_u32 vcc, 64, v0
    s_and_saveexec_b64 s[40:41], vcc
    s_cbranch_execz P_L4
    v_lshlrev_b32 v1, 4, v0
    ds_read_b128 v[48:51], v1
    s_waitcnt lgkmcnt(0)
    v_add_u32 v52, v48, v49
    v_add_u32 v53, v52, v50
    v_add_u32 v54, v53, v51
    v_mov_b32 v55, v54
    ''')
    dpp_scan(A, 55)
    A.e('''
    v_sub_u32 v56, v55, v54
    v_add_u32 v57, v56, v48
    v_add_u32 v58, v56, v52
    v_add_u32 v59, v56, v53
    ds_write_b128 v1, v[56:59] offset:%d
    v_lshl_or_b32 v60, v48, 16, v56
    v_lshl_or_b32 v61, v49, 16, v57
    v_lshl_or_b32 v62, v50, 16, v58
    v_lshl_or_b32 v63, v51, 16, v59
    s_and_b32 s3, s2, 7
    s_lshl_b32 s3, s3, 5
    s_lshr_b32 s4, s2, 3
    s_add_u32 s3, s3, s4
    s_lshl_b32 s3, s3, 2
    s_add_u32 s3, s3, %d
    v_lshlrev_b32 v1, 12, v0
    buffer_store_dword v60, v1, s[20:23], s3 offen
    buffer_store_dword v61, v1, s[20:23], s3 offen offset:1024
    buffer_store_dword v62, v1, s[20:23], s3 offen offset:2048
    buffer_store_dword v63, v1, s[20:23], s3 offen offset:3072
    ''' % (LS, TAB))
    A.label('P_L4')
    A.e('''
    s_mov_b64 exec, -1
    s_waitcnt lgkmcnt(0)
    s_barrier
    s_mov_b64 exec, s[44:45]
    s_cbranch_execz P_L5
    ''')
    for i in range(4):
        A.e('ds_read_b32 %s, %s offset:%d' % (v(48 + i), v(40 + i), LS))
    A.e('s_movk_i32 s6, %d' % LI)
    A.e('s_waitcnt lgkmcnt(0)')
    for i in range(4):
        A.e('v_add_u32 %s, %s, %s' % (v(48 + i), v(48 + i), v(vRk + i)))
        A.e('v_mad_u32_u24 %s, %s, 12, s6' % (v(48 + i), v(48 + i)))
    for i in range(4):
        A.e('ds_write2_b32 %s, %s, %s offset0:0 offset1:1' % (v(48 + i), v(vW0 + i), v(vW1 + i)))
        A.e('ds_write_b32 %s, %s offset:8' % (v(48 + i), v(vW2 + i)))
    A.label('P_L5')
    A.e('''
    s_mov_b64 exec, -1
    s_waitcnt lgkmcnt(0)
    s_barrier
    v_lshlrev_b32 v1, 4, v0
    ds_read_b128 v[4:7], v1 offset:%d
    ds_read_b128 v[8:11], v1 offset:%d
    s_mul_i32 s3, s2, %d
    s_add_u32 s4, s3, 16384
    s_add_u32 s5, s3, 32768
    s_waitcnt lgkmcnt(1)
    buffer_store_dwordx4 v[4:7], v1, s[20:23], s3 offen
    s_waitcnt lgkmcnt(0)
    buffer_store_dwordx4 v[8:11], v1, s[20:23], s4 offen
    v_cmp_gt_u32 vcc, %d, v0
    s_and_saveexec_b64 s[40:41], vcc
    s_cbranch_execz P_END
    ds_read_b128 v[12:15], v1 offset:%d
    s_waitcnt lgkmcnt(0)
    buffer_store_dwordx4 v[12:15], v1, s[20:23], s5 offen
    s_endpgm
    ''' % (LI, LI + 16384, CH * 12, CH * 12 // 16 - 2048, LI + 32768))
    A.label('P_WEIGHTS')
    A.e('''
    v_lshrrev_b32 v1, 6, v0
    s_nop 0
    v_readfirstlane_b32 s3, v1
    s_sub_u32 s4, s2, %d
    s_lshl_b32 s4, s4, 4
    s_nop 0
    s_add_u32 s3, s3, s4
    s_cmp_ge_u32 s3, 50
    s_cbranch_scc1 P_END
    v_and_b32 v1, 63, v0
    v_and_b32 v2, 15, v1
    v_lshrrev_b32 v3, 4, v1
    s_lshl_b32 s6, s3, 10
    s_add_u32 s6, s6, %d
    v_lshlrev_b32 v30, 4, v1
    s_cmp_ge_u32 s3, 10
    s_cbranch_scc1 P_WSI
    ''' % (NCH, WFR))
    def loads(srd, stride):
        A.e('v_add_u32 v5, %d, v4' % (4 * stride))
        for i in range(8):
            A.e('buffer_load_ushort %s, %s, %s, 0 offen offset:%d' % (v(10 + i), v(4 if i < 4 else 5), srd, (i & 3) * stride))
        A.e('s_waitcnt vmcnt(0)')
        for i in range(4):
            A.e('v_lshl_or_b32 %s, %s, 16, %s' % (v(20 + i), v(11 + 2 * i), v(10 + 2 * i)))
        A.e('buffer_store_dwordx4 v[20:23], v30, s[20:23], s6 offen')
        A.e('s_endpgm')
    A.e('''
    s_lshr_b32 s4, s3, 1
    s_and_b32 s5, s3, 1
    s_lshl_b32 s4, s4, 6
    s_lshl_b32 s5, s5, 1
    s_add_u32 s4, s4, s5
    v_and_b32 v6, 1, v3
    v_mul_u32_u24 v6, 0xa00, v6
    v_lshrrev_b32 v7, 1, v3
    v_lshl_add_u32 v4, v2, 2, v6
    v_add_u32 v4, v4, v7
    v_add_u32 v4, s4, v4
    v_lshlrev_b32 v4, 1, v4
    ''')
    loads('s[24:27]', 640)
    A.label('P_WSI')
    A.e('''
    s_sub_u32 s4, s3, 10
    s_cmp_ge_u32 s3, 26
    s_cselect_b32 s5, 16, 0
    s_sub_u32 s4, s4, s5
    s_lshr_b32 s7, s4, 2
    s_and_b32 s4, s4, 3
    s_lshr_b32 s36, s4, 1
    s_lshl_b32 s36, s36, 5
    s_and_b32 s37, s4, 1
    s_lshl_b32 s37, s37, 2
    s_add_u32 s36, s36, s37
    s_lshl_b32 s7, s7, 11
    s_add_u32 s36, s36, s7
    v_lshrrev_b32 v6, 2, v2
    v_and_b32 v7, 3, v2
    v_lshl_add_u32 v4, v6, 3, v7
    v_lshl_add_u32 v4, v3, 9, v4
    v_add_u32 v4, s36, v4
    v_lshlrev_b32 v4, 1, v4
    s_cmp_ge_u32 s3, 26
    s_cbranch_scc1 P_WSI1
    ''')
    loads('s[28:31]', 128)
    A.label('P_WSI1')
    loads('s[32:35]', 128)
    A.label('P_END')
    A.e('s_endpgm')
    return dict(name=K, vgpr=64, sgpr=48, lds=LI + CH * 12, block=1024, grid=256)

def gen_main(A, opt):
    K = 'main_kernel'
    U = opt.U; G = U // 2
    L_WSI = 0; L_STG = 40960; STGW = 5632
    L_SRC = 86016; L_EOF = 102400; L_YR = 118784
    L_HIST = 151552; L_SEG = 152576; L_DH = 154624; L_DS = 154880; L_SORT = 155136
    L_ST = 156160; L_OFF = 156416; L_QI = 156672; L_MISC = 157184; L_END = 157248
    RAWCAP = 3744; CAP = 4096
    OOB = 0x80000000
    sX, sE, sW, sO = 8, 12, 16, 20
    sN0, sNN, sWv, sM, sLeft, sRho, sRet = 24, 25, 26, 27, 28, 29, 30
    sNq, sT0, sT1, sT2, sT3 = 32, 33, 34, 35, 36
    sK0 = 38
    sSv = 40
    sNodes = 42; sNeg = 43
    sMk = 44
    V = Regs('v', 1, 256)
    vLane = V.alloc('lane')
    vTmp = V.alloc('tmp', 4, 2)
    acc = V.alloc('acc', 44, 2)
    R = V.alloc('R', 40, 4)
    X = V.alloc('X', 8 * U, 2)
    Aop = V.alloc('Aop', 4 * G, 4)
    T = V.alloc('T', 18, 2)
    Y = V.alloc('Y', 6)
    yraw = V.alloc('yraw', 4, 2)
    sraw = V.alloc('sraw', 2)
    eraw = V.alloc('eraw')
    voffx = V.alloc('voffx', 2)
    voffa = V.alloc('voffa')
    pS = V.alloc('pS'); pY = V.alloc('pY'); pE = V.alloc('pE')
    cLx = V.alloc('cLx'); cLa = V.alloc('cLa'); cMask = V.alloc('cMask'); cSign = V.alloc('cSign')
    pStW = V.alloc('pStW'); pB0 = V.alloc('pB0'); pB1 = V.alloc('pB1'); pWs = V.alloc('pWs')
    cOut = V.alloc('cOut'); cSh = V.alloc('cSh'); vQS = V.alloc('vQS'); vQN = V.alloc('vQN')
    nv = (V.hi + 3) // 4 * 4
    NA = 40
    assert nv + NA <= 256, nv
    def accr(name, t, j=0):
        base = dict(A00=0, A11=1, A01=2, A10=5, AX=8)[name] + j
        return acc + base * 4 + t
    def Rr(p, sig, t):
        return R + (p * 2 + (t >> 1)) * 4 + 2 * sig + (t & 1)
    def Xr(u, seg, h):
        return X + u * 8 + seg * 2 + h

    A.raw('.p2align 8')
    A.raw('.type %s,@function' % K)
    A.label(K)
    A.e('''
    s_cmp_ge_u32 s2, 256
    s_cbranch_scc1 M_END
    s_load_dwordx2 s[8:9], s[0:1], 0
    s_load_dwordx2 s[12:13], s[0:1], 16
    s_load_dwordx2 s[16:17], s[0:1], 88
    s_load_dwordx2 s[20:21], s[0:1], 72
    s_mov_b32 s10, %d
    s_mov_b32 s11, 0x20000
    s_mov_b32 s14, %d
    s_mov_b32 s15, 0x20000
    s_mov_b32 s18, %d
    s_mov_b32 s19, 0x20000
    s_mov_b32 s22, %d
    s_mov_b32 s23, 0x20000
    ''' % (N * 512, E * 32, WS_SIZE, N * 512))
    A.e('v_lshrrev_b32 %s, 6, v0' % v(vTmp))
    A.e('v_and_b32 %s, 63, v0' % v(vLane))
    A.e('v_readfirstlane_b32 %s, %s' % (s(sWv), v(vTmp)))
    A.e('s_mul_i32 %s, s2, 3125' % s(sT0))
    A.e('s_add_u32 %s, %s, 15' % (s(sN0), s(sT0)))
    A.e('s_add_u32 %s, %s, 3140' % (s(sT1), s(sT0)))
    A.e('s_lshr_b32 %s, %s, 4' % (s(sN0), s(sN0)))
    A.e('s_lshr_b32 %s, %s, 4' % (s(sT1), s(sT1)))
    A.e('s_sub_u32 %s, %s, %s' % (s(sNN), s(sT1), s(sN0)))
    A.e('v_lshlrev_b32 %s, 4, %s' % (v(pWs), v(vLane)))
    A.e('s_waitcnt lgkmcnt(0)')
    tT = R
    A.e('s_cmp_lg_u32 %s, 0' % s(sWv))
    A.e('s_cbranch_scc1 M_NOTAB')
    A.e('s_lshl_b32 %s, s2, 10' % s(sT0))
    A.e('s_add_u32 %s, %s, %d' % (s(sT0), s(sT0), TAB))
    A.e('buffer_load_dwordx4 %s, %s, %s, %s offen' % (v(tT, 4), v(pWs), s(sW, 4), s(sT0)))
    A.label('M_NOTAB')
    for m in range(10):
        A.e('s_mov_b32 %s, %d' % (s(sT1), WFR + m * 1024))
        A.e('buffer_load_dwordx4 %s, %s, %s, %s offen' % (a(4 * m, 4), v(pWs), s(sW, 4), s(sT1)))
    A.e('s_mul_i32 %s, %s, 5120' % (s(sT1), s(sWv)))
    for i in range(5):
        A.e('s_add_u32 m0, %s, %d' % (s(sT1), L_WSI + i * 1024))
        A.e('s_add_u32 %s, %s, %d' % (s(sT2), s(sT1), WFR + 10 * 1024 + i * 1024))
        A.e('buffer_load_dwordx4 %s, %s, %s offen lds' % (v(pWs), s(sW, 4), s(sT2)))
    z = X
    A.e('v_mov_b32 %s, 0x%x' % (v(z), OOB))
    for i in range(1, 4):
        A.e('v_mov_b32 %s, %s' % (v(z + i), v(z)))
    for i in range(4, 8):
        A.e('v_mov_b32 %s, 0' % v(z + i))
    A.e('v_lshlrev_b32 %s, 4, v0' % v(vTmp))
    A.e('v_add_u32 %s, %d, %s' % (v(vTmp + 1), L_SRC, v(vTmp)))
    for i in range(4):
        A.e('ds_write_b128 %s, %s offset:%d' % (v(vTmp + 1), v(z, 4), i * 8192))
    A.e('v_add_u32 %s, %d, %s' % (v(vTmp + 1), L_YR, v(vTmp)))
    for i in range(4):
        A.e('ds_write_b128 %s, %s offset:%d' % (v(vTmp + 1), v(z + 4, 4), i * 8192))
    A.e('v_cmp_gt_u32 vcc, 64, v0')
    A.e('v_add_u32 %s, %d, %s' % (v(vTmp + 1), L_HIST, v(vTmp)))
    A.e('v_add_u32 %s, %d, %s' % (v(vTmp + 2), L_DH - 1024, v(vTmp)))
    A.e('v_cndmask_b32 %s, %s, %s, vcc' % (v(vTmp + 1), v(vTmp + 2), v(vTmp + 1)))
    A.e('v_cmp_gt_u32 vcc, 80, v0')
    A.e('s_and_saveexec_b64 %s, vcc' % s(sSv, 2))
    A.e('ds_write_b128 %s, %s' % (v(vTmp + 1), v(z + 4, 4)))
    A.e('s_mov_b64 exec, %s' % s(sSv, 2))
    A.e('s_cmp_lg_u32 %s, 0' % s(sWv))
    A.e('s_cbranch_scc1 M_B_DONE')
    c = R + 4; cn = R + 8; r0 = R + 12; pf = R + 16; tt = R + 20
    A.e('s_waitcnt vmcnt(15)')
    A.e('v_and_b32 %s, 7, %s' % (v(tt), v(vLane)))
    A.e('v_lshrrev_b32 %s, 3, %s' % (v(tt + 1), v(vLane)))
    A.e('v_lshl_add_u32 %s, %s, 5, %s' % (v(tt), v(tt), v(tt + 1)))
    A.e('s_movk_i32 %s, %d' % (s(sT0), CH))
    for i in range(4):
        A.e('v_add_u32 %s, %d, %s' % (v(c + i), 8 * i, v(tt)))
        A.e('v_lshrrev_b32 %s, 16, %s' % (v(cn + i), v(tT + i)))
        A.e('v_cmp_gt_u32 vcc, %d, %s' % (NCH, v(c + i)))
        A.e('v_and_b32 %s, 0xffff, %s' % (v(r0 + i), v(tT + i)))
        A.e('s_nop 0')
        A.e('v_cndmask_b32 %s, 0, %s, vcc' % (v(cn + i), v(cn + i)))
        A.e('v_mad_u32_u24 %s, %s, %s, %s' % (v(r0 + i), v(c + i), s(sT0), v(r0 + i)))
    A.e('v_add_u32 %s, %s, %s' % (v(pf + 1), v(cn), v(cn + 1)))
    A.e('v_add_u32 %s, %s, %s' % (v(pf + 2), v(pf + 1), v(cn + 2)))
    A.e('v_add_u32 %s, %s, %s' % (v(pf + 3), v(pf + 2), v(cn + 3)))
    A.e('v_mov_b32 %s, %s' % (v(tt), v(pf + 3)))
    dpp_scan(A, tt)
    A.e('v_sub_u32 %s, %s, %s' % (v(tt + 1), v(tt), v(pf + 3)))
    A.e('v_add_u32 %s, %s, %s' % (v(pf + 3), v(tt + 1), v(pf + 2)))
    A.e('v_add_u32 %s, %s, %s' % (v(pf + 2), v(tt + 1), v(pf + 1)))
    A.e('v_add_u32 %s, %s, %s' % (v(pf + 1), v(tt + 1), v(cn)))
    A.e('v_mov_b32 %s, %s' % (v(pf), v(tt + 1)))
    sg = R + 24
    for i in range(4):
        A.e('v_mov_b32 %s, %s' % (v(sg + 2 * i), v(r0 + i)))
        A.e('v_and_b32 %s, 0xffff, %s' % (v(sg + 2 * i + 1), v(pf + i)))
        A.e('v_lshl_or_b32 %s, %s, 16, %s' % (v(sg + 2 * i + 1), v(cn + i), v(sg + 2 * i + 1)))
    A.e('v_lshlrev_b32 %s, 5, %s' % (v(tt + 2), v(vLane)))
    A.e('v_add_u32 %s, %d, %s' % (v(tt + 2), L_SEG, v(tt + 2)))
    A.e('ds_write_b128 %s, %s' % (v(tt + 2), v(sg, 4)))
    A.e('ds_write_b128 %s, %s offset:16' % (v(tt + 2), v(sg + 4, 4)))
    A.e('v_readlane_b32 %s, %s, 63' % (s(sT0), v(tt)))
    A.e('v_mov_b32 %s, %d' % (v(tt + 2), L_MISC))
    A.e('s_nop 0')
    A.e('v_mov_b32 %s, %s' % (v(tt + 3), s(sT0)))
    A.e('ds_write_b32 %s, %s' % (v(tt + 2), v(tt + 3)))
    A.label('M_B_DONE')
    A.e('s_waitcnt lgkmcnt(0)')
    A.e('s_barrier')
    A.e('v_mov_b32 %s, %d' % (v(vTmp), L_MISC))
    A.e('ds_read_b32 %s, %s' % (v(vTmp + 1), v(vTmp)))
    seg = R
    rec = X
    vo = acc
    vJ = acc + 8; vMax = acc + 9; vK = acc + 10; vOne = acc + 11; vA = acc + 12; vOob = acc + 13; vA2 = acc + 14
    A.e('v_lshrrev_b32 %s, 4, v0' % v(vA))
    A.e('v_lshlrev_b32 %s, 3, %s' % (v(vA), v(vA)))
    A.e('v_add_u32 %s, %d, %s' % (v(vA), L_SEG, v(vA)))
    for k in range(8):
        A.e('ds_read_b64 %s, %s offset:%d' % (v(seg + 2 * k, 2), v(vA), k * 256))
    A.e('v_and_b32 %s, 15, v0' % v(vJ))
    A.e('v_mov_b32 %s, 1' % v(vOne))
    A.e('v_mov_b32 %s, 0x%x' % (v(vOob), OOB))
    A.e('s_waitcnt lgkmcnt(8)')
    A.e('v_readfirstlane_b32 %s, %s' % (s(sM), v(vTmp + 1)))
    A.e('s_waitcnt lgkmcnt(0)')
    A.e('s_cmp_gt_u32 %s, %d' % (s(sM), RAWCAP))
    A.e('s_cbranch_scc1 M_SLOW')
    A.e('v_lshrrev_b32 %s, 16, %s' % (v(vMax), v(seg + 1)))
    for k in range(1, 8):
        A.e('v_lshrrev_b32 %s, 16, %s' % (v(vK), v(seg + 2 * k + 1)))
        A.e('v_max_u32 %s, %s, %s' % (v(vMax), v(vMax), v(vK)))
    A.label('M_C_LOOP')
    for k in range(8):
        A.e('v_lshrrev_b32 %s, 16, %s' % (v(vK), v(seg + 2 * k + 1)))
        A.e('v_cmp_lt_u32 %s, %s, %s' % (s(sMk + 2 * k, 2), v(vJ), v(vK)))
        A.e('v_add_u32 %s, %s, %s' % (v(vo + k), v(seg + 2 * k), v(vJ)))
        A.e('v_mul_u32_u24 %s, 12, %s' % (v(vo + k), v(vo + k)))
        A.e('v_cndmask_b32 %s, %s, %s, %s' % (v(vo + k), v(vOob), v(vo + k), s(sMk + 2 * k, 2)))
        A.e('buffer_load_dwordx3 %s, %s, %s, 0 offen' % (v(rec + 4 * k, 3), v(vo + k), s(sW, 4)))
    A.e('s_movk_i32 %s, 12' % s(sT0))
    for k in range(8):
        A.e('s_waitcnt vmcnt(%d)' % (7 - k))
        A.e('s_mov_b64 exec, %s' % s(sMk + 2 * k, 2))
        A.e('v_lshrrev_b32 %s, 20, %s' % (v(vK), v(rec + 4 * k + 2)))
        A.e('v_lshlrev_b32 %s, 2, %s' % (v(vK), v(vK)))
        A.e('v_add_u32 %s, %d, %s' % (v(vK), L_HIST, v(vK)))
        A.e('ds_add_u32 %s, %s' % (v(vK), v(vOne)))
        A.e('v_and_b32 %s, 0xffff, %s' % (v(vA), v(seg + 2 * k + 1)))
        A.e('v_add_u32 %s, %s, %s' % (v(vA), v(vA), v(vJ)))
        A.e('v_mul_u32_u24 %s, 12, %s' % (v(vA), v(vA)))
        A.e('v_add_u32 %s, %d, %s' % (v(vA), L_STG, v(vA)))
        A.e('ds_write2_b32 %s, %s, %s offset0:0 offset1:1' % (v(vA), v(rec + 4 * k), v(rec + 4 * k + 1)))
        A.e('ds_write_b32 %s, %s offset:8' % (v(vA), v(rec + 4 * k + 2)))
        A.e('s_mov_b64 exec, -1')
    A.e('v_add_u32 %s, 16, %s' % (v(vJ), v(vJ)))
    A.e('v_and_b32 %s, 0xfffffff0, %s' % (v(vK), v(vJ)))
    A.e('v_cmp_gt_u32 vcc, %s, %s' % (v(vMax), v(vK)))
    A.e('s_cbranch_vccnz M_C_LOOP')
    A.e('s_waitcnt lgkmcnt(0)')
    A.e('s_barrier')
    A.e('s_cmp_lg_u32 %s, 0' % s(sWv))
    A.e('s_cbranch_scc1 M_D_DONE')
    dg = R; k2 = R + 4; rk = R + 8; en = R + 12; t0 = R + 16; t1 = R + 17; t2 = R + 18; t3 = R + 19; one = R + 20; idx = R + 21; stp = R + 22; nd = R + 23
    A.e('v_add_u32 %s, %d, %s' % (v(t0), L_HIST, v(pWs)))
    A.e('ds_read_b128 %s, %s' % (v(dg, 4), v(t0)))
    A.e('v_mov_b32 %s, 1' % v(one))
    A.e('v_cmp_gt_u32 %s, 49, %s' % (s(sMk, 2), v(vLane)))
    A.e('s_waitcnt lgkmcnt(0)')
    for i in range(4):
        A.e('v_min_u32 %s, 63, %s' % (v(k2 + i), v(dg + i)))
        A.e('v_sub_u32 %s, 63, %s' % (v(k2 + i), v(k2 + i)))
        A.e('v_lshlrev_b32 %s, 2, %s' % (v(k2 + i), v(k2 + i)))
        A.e('v_add_u32 %s, %d, %s' % (v(k2 + i), L_DH, v(k2 + i)))
    A.e('s_mov_b64 exec, %s' % s(sMk, 2))
    for i in range(4):
        A.e('ds_add_rtn_u32 %s, %s, %s' % (v(rk + i), v(k2 + i), v(one)))
    A.e('s_mov_b64 exec, -1')
    A.e('v_lshlrev_b32 %s, 2, %s' % (v(t0), v(vLane)))
    A.e('v_add_u32 %s, %d, %s' % (v(t1), L_DH, v(t0)))
    A.e('ds_read_b32 %s, %s' % (v(t2), v(t1)))
    A.e('s_waitcnt lgkmcnt(0)')
    A.e('v_mov_b32 %s, %s' % (v(t3), v(t2)))
    dpp_scan(A, t3)
    A.e('v_sub_u32 %s, %s, %s' % (v(t3), v(t3), v(t2)))
    A.e('ds_write_b32 %s, %s offset:%d' % (v(t1), v(t3), L_DS - L_DH))
    A.e('s_mov_b64 exec, %s' % s(sMk, 2))
    for i in range(4):
        A.e('ds_read_b32 %s, %s offset:%d' % (v(en + i), v(k2 + i), L_DS - L_DH))
    A.e('s_waitcnt lgkmcnt(0)')
    for i in range(4):
        A.e('v_add_u32 %s, %s, %s' % (v(rk + i), v(rk + i), v(en + i)))
        A.e('v_lshlrev_b32 %s, 2, %s' % (v(rk + i), v(rk + i)))
        A.e('v_add_u32 %s, %d, %s' % (v(rk + i), L_SORT, v(rk + i)))
        A.e('v_lshl_add_u32 %s, %s, 2, %d' % (v(t2), v(vLane), i))
        A.e('v_cmp_gt_u32 vcc, %s, %s' % (s(sNN), v(t2)))
        A.e('v_mov_b32 %s, 0xff' % v(t3))
        A.e('s_nop 0')
        A.e('v_cndmask_b32 %s, %s, %s, vcc' % (v(t2), v(t3), v(t2)))
        A.e('v_lshl_or_b32 %s, %s, 8, %s' % (v(en + i), v(dg + i), v(t2)))
        A.e('ds_write_b32 %s, %s' % (v(rk + i), v(en + i)))
    A.e('v_add_u32 %s, %d, %s' % (v(t0), L_SORT, v(pWs)))
    A.e('ds_read_b128 %s, %s' % (v(en, 4), v(t0)))
    A.e('s_mov_b64 exec, -1')
    A.e('v_and_b32 %s, 7, %s' % (v(t1), v(vLane)))
    A.e('v_cmp_eq_u32 vcc, 7, %s' % v(t1))
    A.e('v_mov_b32 %s, %d' % (v(t2), U))
    A.e('v_lshlrev_b32 %s, 2, %s' % (v(t3), v(vLane)))
    A.e('v_cndmask_b32 %s, 0, %s, vcc' % (v(t2), v(t2)))
    A.e('v_add_u32 %s, %d, %s' % (v(t3), L_ST, v(t3)))
    A.e('ds_write_b32 %s, %s' % (v(t3), v(t2)))
    A.e('s_mov_b64 exec, %s' % s(sMk, 2))
    A.e('s_waitcnt lgkmcnt(0)')
    A.e('v_max_u32 %s, %s, %s' % (v(stp), v(en), v(en + 1)))
    A.e('v_max3_u32 %s, %s, %s, %s' % (v(stp), v(stp), v(en + 2), v(en + 3)))
    A.e('v_lshrrev_b32 %s, 8, %s' % (v(stp), v(stp)))
    A.e('v_add_u32 %s, 1, %s' % (v(stp), v(stp)))
    A.e('v_and_b32 %s, 0xfffffffe, %s' % (v(stp), v(stp)))
    for i in range(4):
        A.e('v_and_b32 %s, 0xff, %s' % (v(en + i), v(en + i)))
    A.e('v_lshl_or_b32 %s, %s, 8, %s' % (v(nd), v(en + 1), v(en)))
    A.e('v_lshl_or_b32 %s, %s, 16, %s' % (v(nd), v(en + 2), v(nd)))
    A.e('v_lshl_or_b32 %s, %s, 24, %s' % (v(nd), v(en + 3), v(nd)))
    A.e('v_lshrrev_b32 %s, 3, %s' % (v(t0), v(vLane)))
    A.e('v_and_b32 %s, 1, %s' % (v(t1), v(t0)))
    A.e('v_mul_u32_u24 %s, 7, %s' % (v(t1), v(t1)))
    A.e('v_and_b32 %s, 7, %s' % (v(t2), v(vLane)))
    A.e('v_xor_b32 %s, %s, %s' % (v(t1), v(t1), v(t2)))
    A.e('v_lshl_add_u32 %s, %s, 3, %s' % (v(idx), v(t1), v(t0)))
    A.e('v_lshlrev_b32 %s, 2, %s' % (v(t0), v(idx)))
    A.e('v_add_u32 %s, %d, %s' % (v(t0), L_ST, v(t0)))
    A.e('ds_write_b32 %s, %s' % (v(t0), v(stp)))
    A.e('v_lshlrev_b32 %s, 3, %s' % (v(t1), v(idx)))
    A.e('v_add_u32 %s, %d, %s' % (v(t1), L_QI, v(t1)))
    A.e('ds_write2_b32 %s, %s, %s offset0:0 offset1:1' % (v(t1), v(stp), v(nd)))
    A.e('s_mov_b64 exec, -1')
    A.e('ds_read_b32 %s, %s' % (v(t2), v(t3)))
    A.e('s_waitcnt lgkmcnt(0)')
    A.e('v_mov_b32 %s, %s' % (v(t1), v(t2)))
    dpp_scan(A, t1)
    A.e('v_sub_u32 %s, %s, %s' % (v(t2), v(t1), v(t2)))
    A.e('ds_write_b32 %s, %s offset:%d' % (v(t3), v(t2), L_OFF - L_ST))
    A.e('v_readlane_b32 %s, %s, 63' % (s(sT0), v(t1)))
    A.e('v_mov_b32 %s, %d' % (v(t1), L_MISC))
    A.e('s_nop 0')
    A.e('v_mov_b32 %s, %s' % (v(t2), s(sT0)))
    A.e('ds_write_b32 %s, %s offset:4' % (v(t1), v(t2)))
    A.e('s_mov_b64 exec, %s' % s(sMk, 2))
    A.e('ds_read_b32 %s, %s offset:%d' % (v(t2), v(t0), L_OFF - L_ST))
    A.e('s_waitcnt lgkmcnt(0)')
    A.e('v_lshlrev_b32 %s, 2, %s' % (v(t2), v(t2)))
    for i in range(4):
        A.e('v_lshlrev_b32 %s, 2, %s' % (v(en + i), v(en + i)))
        A.e('v_add_u32 %s, %d, %s' % (v(en + i), L_HIST, v(en + i)))
        A.e('v_add_u32 %s, %d, %s' % (v(t1), i, v(t2)))
        A.e('ds_write_b32 %s, %s' % (v(en + i), v(t1)))
    A.e('s_mov_b64 exec, -1')
    A.label('M_D_DONE')
    A.e('s_waitcnt lgkmcnt(0)')
    A.e('s_barrier')
    A.e('v_mov_b32 %s, %d' % (v(vTmp), L_MISC))
    A.e('ds_read_b32 %s, %s offset:4' % (v(vTmp + 1), v(vTmp)))
    rw = X
    vI = R; sl = R + 8; ea = R + 16; four = R + 24; tA = R + 25; tB = R + 26; tC = R + 27; tD = R + 28
    for k in range(8):
        A.e('v_add_u32 %s, %d, v0' % (v(vI + k), 512 * k))
        A.e('v_mul_u32_u24 %s, 12, %s' % (v(ea + k), v(vI + k)))
        A.e('v_add_u32 %s, %d, %s' % (v(ea + k), L_STG, v(ea + k)))
        A.e('v_cmp_gt_u32 %s, %s, %s' % (s(sMk + 2 * k, 2), s(sM), v(vI + k)))
    for k in range(8):
        A.e('ds_read2_b32 %s, %s offset0:0 offset1:1' % (v(rw + 4 * k, 2), v(ea + k)))
        A.e('ds_read_b32 %s, %s offset:8' % (v(rw + 4 * k + 2), v(ea + k)))
        if k == 3:
            A.e('s_waitcnt lgkmcnt(8)')
            A.e('v_readfirstlane_b32 %s, %s' % (s(sT0), v(vTmp + 1)))
    A.e('v_mov_b32 %s, 4' % v(four))
    A.e('s_cmp_gt_u32 %s, %d' % (s(sT0), CAP // 4))
    A.e('s_cbranch_scc1 M_SLOW')
    A.e('s_waitcnt lgkmcnt(0)')
    for k in range(8):
        A.e('v_lshrrev_b32 %s, 20, %s' % (v(ea + k), v(rw + 4 * k + 2)))
        A.e('v_lshlrev_b32 %s, 2, %s' % (v(ea + k), v(ea + k)))
        A.e('v_add_u32 %s, %d, %s' % (v(ea + k), L_HIST, v(ea + k)))
    for k in range(8):
        A.e('s_mov_b64 exec, %s' % s(sMk + 2 * k, 2))
        A.e('ds_add_rtn_u32 %s, %s, %s' % (v(sl + k), v(ea + k), v(four)))
    A.e('s_mov_b64 exec, -1')
    for k in range(8):
        A.e('v_lshrrev_b32 %s, 16, %s' % (v(rw + 4 * k + 3), v(rw + 4 * k + 1)))
        A.e('v_lshlrev_b32 %s, 9, %s' % (v(rw + 4 * k + 3), v(rw + 4 * k + 3)))
        A.e('v_and_b32 %s, 0xffff, %s' % (v(rw + 4 * k + 1), v(rw + 4 * k + 1)))
        A.e('v_and_b32 %s, 0xfffff, %s' % (v(rw + 4 * k + 2), v(rw + 4 * k + 2)))
        A.e('v_lshlrev_b32 %s, 5, %s' % (v(rw + 4 * k + 2), v(rw + 4 * k + 2)))
    A.e('s_waitcnt lgkmcnt(0)')
    for k in range(8):
        A.e('s_mov_b64 exec, %s' % s(sMk + 2 * k, 2))
        A.e('v_lshlrev_b32 %s, 2, %s' % (v(tA), v(sl + k)))
        A.e('v_add_u32 %s, %d, %s' % (v(tB), L_SRC, v(tA)))
        A.e('v_lshlrev_b32 %s, 1, %s' % (v(tC), v(tA)))
        A.e('v_add_u32 %s, %d, %s' % (v(tC), L_YR, v(tC)))
        A.e('ds_write_b32 %s, %s' % (v(tB), v(rw + 4 * k + 3)))
        A.e('ds_write_b32 %s, %s offset:%d' % (v(tB), v(rw + 4 * k + 2), L_EOF - L_SRC))
        A.e('ds_write_b64 %s, %s' % (v(tC), v(rw + 4 * k, 2)))
    A.e('s_mov_b64 exec, -1')
    q = vTmp; col = vTmp + 1; t2 = vTmp + 2; t3 = vTmp + 3
    A.e('v_lshrrev_b32 %s, 4, %s' % (v(q), v(vLane)))
    A.e('v_and_b32 %s, 15, %s' % (v(col), v(vLane)))
    A.e('v_lshlrev_b32 %s, 3, %s' % (v(cLx), v(col)))
    A.e('v_mov_b32 %s, 0xffff0000' % v(cMask))
    A.e('v_mov_b32 %s, 0x80000000' % v(cSign))
    A.e('v_lshrrev_b32 %s, 1, %s' % (v(t2), v(q)))
    A.e('v_and_b32 %s, 1, %s' % (v(t3), v(col)))
    A.e('v_cmp_eq_u32 vcc, %s, %s' % (v(t2), v(t3)))
    A.e('v_and_b32 %s, 1, %s' % (v(t2), v(q)))
    A.e('v_lshlrev_b32 %s, 4, %s' % (v(t2), v(t2)))
    A.e('v_mov_b32 %s, 0x40000000' % v(t3))
    A.e('v_cndmask_b32 %s, %s, %s, vcc' % (v(cLa), v(t3), v(t2)))
    A.e('s_mul_i32 %s, %s, %d' % (s(sT0), s(sWv), STGW))
    A.e('s_add_u32 %s, %s, %d' % (s(sT0), s(sT0), L_STG))
    A.e('s_movk_i32 %s, 1408' % s(sT1))
    A.e('v_mad_u32_u24 %s, %s, %s, %s' % (v(pStW), v(q), s(sT1), v(cLx)))
    A.e('v_add_u32 %s, %s, %s' % (v(pStW), s(sT0), v(pStW)))
    A.e('v_lshrrev_b32 %s, 2, %s' % (v(t2), v(col)))
    A.e('v_lshlrev_b32 %s, 3, %s' % (v(cSh), v(t2)))
    A.e('v_lshlrev_b32 %s, 4, %s' % (v(t3), v(q)))
    A.e('v_mad_u32_u24 %s, %s, %s, %s' % (v(pB0), v(t2), s(sT1), v(t3)))
    A.e('v_add_u32 %s, %s, %s' % (v(pB0), s(sT0), v(pB0)))
    A.e('v_and_b32 %s, 3, %s' % (v(t2), v(col)))
    A.e('v_lshl_add_u32 %s, %s, 7, %s' % (v(cOut), v(t2), v(t3)))
    A.e('v_cmp_eq_u32 %s, 0, %s' % (s(sK0, 2), v(t2)))
    A.e('v_max_u32 %s, 1, %s' % (v(t2), v(t2)))
    A.e('s_movk_i32 %s, 384' % s(sT1))
    A.e('v_mad_u32_u24 %s, %s, %s, %s' % (v(pB1), v(t2), s(sT1), v(pB0)))
    A.e('v_subrev_u32 %s, 128, %s' % (v(pB1), v(pB1)))
    A.e('s_mov_b32 %s, 0xbfb8aa3b' % s(sNeg))
    A.e('s_waitcnt vmcnt(0) lgkmcnt(0)')
    A.e('s_barrier')
    A.e('s_lshl_b32 %s, %s, 6' % (s(sT0), s(sWv)))
    A.e('v_and_b32 %s, 7, %s' % (v(t2), v(vLane)))
    A.e('v_lshlrev_b32 %s, 3, %s' % (v(t2), v(t2)))
    A.e('v_add_u32 %s, %s, %s' % (v(t2), s(sT0), v(t2)))
    A.e('v_add_u32 %s, %d, %s' % (v(t2), L_QI, v(t2)))
    A.e('ds_read2_b32 %s, %s offset0:0 offset1:1' % (v(T, 2), v(t2)))
    A.e('s_lshl_b32 %s, %s, 5' % (s(sT0), s(sWv)))
    A.e('s_add_u32 %s, %s, %d' % (s(sT0), s(sT0), L_OFF))
    A.e('v_mov_b32 %s, %s' % (v(t3), s(sT0)))
    A.e('ds_read_b32 %s, %s' % (v(T + 2), v(t3)))
    A.e('s_cmp_eq_u32 %s, 0' % s(sWv))
    A.e('s_cselect_b32 %s, 7, 6' % s(sNq))
    A.e('s_mov_b32 %s, 0' % s(sRho))
    for i in range(44):
        A.e('v_mov_b32 %s, 0' % v(acc + i))
    A.e('s_waitcnt lgkmcnt(0)')
    A.e('v_mov_b32 %s, %s' % (v(vQS), v(T)))
    A.e('v_mov_b32 %s, %s' % (v(vQN), v(T + 1)))
    A.e('v_lshlrev_b32 %s, 4, %s' % (v(T + 2), v(T + 2)))
    A.e('v_lshl_add_u32 %s, %s, 2, %s' % (v(pS), v(q), v(T + 2)))
    A.e('v_lshlrev_b32 %s, 1, %s' % (v(pY), v(pS)))
    A.e('v_add_u32 %s, %d, %s' % (v(pS), L_SRC, v(pS)))
    A.e('v_add_u32 %s, %d, %s' % (v(pY), L_YR, v(pY)))
    A.e('v_lshrrev_b32 %s, 2, %s' % (v(t2), v(col)))
    A.e('v_lshl_add_u32 %s, %s, 2, %s' % (v(pE), v(t2), v(T + 2)))
    A.e('v_bfe_u32 %s, %s, 1, 1' % (v(t2), v(col)))
    A.e('v_lshl_add_u32 %s, %s, 4, %s' % (v(pE), v(t2), v(pE)))
    A.e('v_add_u32 %s, %d, %s' % (v(pE), L_EOF, v(pE)))
    A.e('v_readlane_b32 %s, %s, 0' % (s(sLeft), v(vQS)))
    A.e('s_nop 0')
    A.e('s_and_b32 %s, %s, 0x7fe' % (s(sLeft), s(sLeft)))
    for g in range(G):
        A.e('ds_read_b32 %s, %s offset:%d' % (v(eraw), v(pE), g * 32))
        A.e('ds_read_b32 %s, %s offset:%d' % (v(sraw), v(pS), g * 32))
        A.e('ds_read_b32 %s, %s offset:%d' % (v(sraw + 1), v(pS), g * 32 + 16))
        A.e('s_waitcnt lgkmcnt(0)')
        A.e('v_add_u32 %s, %s, %s' % (v(voffa), v(eraw), v(cLa)))
        A.e('v_add_u32 %s, %s, %s' % (v(voffx), v(sraw), v(cLx)))
        A.e('v_add_u32 %s, %s, %s' % (v(voffx + 1), v(sraw + 1), v(cLx)))
        A.e('buffer_load_dwordx4 %s, %s, %s, 0 offen' % (v(Aop + 4 * g, 4), v(voffa), s(sE, 4)))
        for sig in range(2):
            u = 2 * g + sig
            for sgm in range(4):
                A.e('buffer_load_dwordx2 %s, %s, %s, 0 offen offset:%d' % (v(Xr(u, sgm, 0), 2), v(voffx + sig), s(sX, 4), sgm * 128))
    A.e('s_cmp_lg_u32 %s, 0' % s(sLeft))
    A.e('s_cbranch_scc1 M_LOOP')
    A.e('s_call_b64 %s, M_POST' % s(sRet, 2))
    Ltot = 4 * U + G
    A.label('M_LOOP')
    for g in range(G):
        A.c('---- group %d' % g)
        A.e('ds_read_b64 %s, %s offset:%d' % (v(yraw, 2), v(pY), (2 * g) * 32))
        A.e('ds_read_b64 %s, %s offset:%d' % (v(yraw + 2, 2), v(pY), (2 * g + 1) * 32))
        A.e('ds_read_b32 %s, %s offset:%d' % (v(eraw), v(pE), (U + 2 * g) * 16))
        A.e('ds_read_b32 %s, %s offset:%d' % (v(sraw), v(pS), (U + 2 * g) * 16))
        A.e('ds_read_b32 %s, %s offset:%d' % (v(sraw + 1), v(pS), (U + 2 * g + 1) * 16))
        A.e('s_waitcnt vmcnt(%d)' % (Ltot - 1))
        for tp in range(2):
            for p in (0, 2, 1, 3, 4):
                m = 2 * p + tp
                A.e('v_mfma_f32_16x16x32_bf16 %s, %s, %s, 0' % (v(R + m * 4, 4), v(Aop + 4 * g, 4), a(4 * m, 4)))
        A.e('s_waitcnt lgkmcnt(0)')
        A.e('v_add_u32 %s, %s, %s' % (v(voffa), v(eraw), v(cLa)))
        A.e('v_add_u32 %s, %s, %s' % (v(voffx), v(sraw), v(cLx)))
        A.e('v_add_u32 %s, %s, %s' % (v(voffx + 1), v(sraw + 1), v(cLx)))
        A.e('buffer_load_dwordx4 %s, %s, %s, 0 offen' % (v(Aop + 4 * g, 4), v(voffa), s(sE, 4)))
        for sig in range(2):
            u = 2 * g + sig
            yr = yraw + 2 * sig
            A.e('v_lshlrev_b32 %s, 16, %s' % (v(Y), v(yr)))
            A.e('v_and_b32 %s, %s, %s' % (v(Y + 1), v(cMask), v(yr)))
            A.e('v_lshlrev_b32 %s, 16, %s' % (v(Y + 2), v(yr + 1)))
            for j in range(3):
                A.e('v_xor_b32 %s, %s, %s' % (v(Y + 3 + j), v(cSign), v(Y + j)))
            A.e('s_waitcnt vmcnt(%d)' % (Ltot - 4))
            for t in range(4):
                b = T + (t & 1) * 9
                sx, f0, f1, f2, tt_, d, g0, g1, g2 = [b + i for i in range(9)]
                fs = [sx, f0, f1, f2]
                for sgm in range(4):
                    src = Xr(u, sgm, t >> 1)
                    if t & 1:
                        A.e('v_and_b32 %s, %s, %s' % (v(fs[sgm]), v(cMask), v(src)))
                    else:
                        A.e('v_lshlrev_b32 %s, 16, %s' % (v(fs[sgm]), v(src)))
                if t == 3:
                    for sgm in range(4):
                        A.e('buffer_load_dwordx2 %s, %s, %s, 0 offen offset:%d' % (v(Xr(u, sgm, 0), 2), v(voffx + sig), s(sX, 4), sgm * 128))
                fm = lambda dst, x, y: A.e('v_fmac_f32 %s, %s, %s' % (v(dst), v(x), v(y)))
                mu = lambda dst, x, y: A.e('v_mul_f32 %s, %s, %s' % (v(dst), v(x), v(y)))
                fm(accr('A00', t), sx, Rr(0, sig, t))
                mu(tt_, sx, Rr(2, sig, t))
                mu(d, f0, Y)
                fm(accr('A01', t, 0), tt_, Y)
                fm(d, f1, Y + 1)
                fm(accr('A01', t, 1), tt_, Y + 1)
                fm(d, f2, Y + 2)
                fm(accr('A01', t, 2), tt_, Y + 2)
                mu(g0, f0, Rr(4, sig, t))
                mu(g1, f1, Rr(4, sig, t))
                mu(g2, f2, Rr(4, sig, t))
                fm(accr('A11', t), d, Rr(1, sig, t))
                fm(accr('A10', t, 0), f0, Rr(3, sig, t))
                fm(accr('A10', t, 1), f1, Rr(3, sig, t))
                fm(accr('A10', t, 2), f2, Rr(3, sig, t))
                fm(accr('AX', t, 0), Y + 1, g2)
                fm(accr('AX', t, 1), Y + 2, g0)
                fm(accr('AX', t, 2), Y + 0, g1)
                fm(accr('AX', t, 0), Y + 5, g1)
                fm(accr('AX', t, 1), Y + 3, g2)
                fm(accr('AX', t, 2), Y + 4, g0)
        if g == G - 1:
            A.e('v_add_u32 %s, %d, %s' % (v(pS), U * 16, v(pS)))
            A.e('v_add_u32 %s, %d, %s' % (v(pE), U * 16, v(pE)))
            A.e('v_add_u32 %s, %d, %s' % (v(pY), U * 32, v(pY)))
        A.e('s_sub_u32 %s, %s, 2' % (s(sLeft), s(sLeft)))
        A.e('s_cmp_lg_u32 %s, 0' % s(sLeft))
        if g == G - 1:
            A.e('s_cbranch_scc1 M_LOOP')
            A.e('s_call_b64 %s, M_POST' % s(sRet, 2))
            A.e('s_branch M_LOOP')
        else:
            lab = 'M_NOPOST_%d' % g
            A.e('s_cbranch_scc1 %s' % lab)
            A.e('s_call_b64 %s, M_POST' % s(sRet, 2))
            A.label(lab)
    A.label('M_POST')
    comps = [('A00', 0, 0), ('A11', 0, 128)]
    for j in range(3):
        comps += [('A01', j, 256 + j * 384), ('A10', j, 256 + j * 384 + 128), ('AX', j, 256 + j * 384 + 256)]
    for n, (nm, j, off) in enumerate(comps):
        tp = T + 2 * (n % 8)
        A.e('v_cvt_pk_bf16_f32 %s, %s, %s' % (v(tp), v(accr(nm, 0, j)), v(accr(nm, 1, j))))
        A.e('v_cvt_pk_bf16_f32 %s, %s, %s' % (v(tp + 1), v(accr(nm, 2, j)), v(accr(nm, 3, j))))
        A.e('ds_write_b64 %s, %s offset:%d' % (v(pStW), v(tp, 2), off))
    A.e('v_readlane_b32 %s, %s, %s' % (s(sNodes), v(vQN), s(sRho)))
    A.e('s_add_u32 %s, %s, 1' % (s(sRho), s(sRho)))
    A.e('s_waitcnt lgkmcnt(0)')
    D0 = R; D1 = R + 16; Bb = R + 32; Wb = acc
    steps = [(0, ks) for ks in range(4)] + [(1, ks) for ks in range(6)]
    def issue(n):
        ch, ks = steps[n]
        A.e('ds_read_b128 %s, %s offset:%d' % (v(Bb + 4 * (n & 1), 4), v(pB0 if ch == 0 else pB1), ks * 64))
        for tt in range(4):
            f = (ks * 4 + tt) if ch == 0 else (16 + ks * 4 + tt)
            A.e('ds_read_b128 %s, %s offset:%d' % (v(Wb + 16 * (n & 1) + 4 * tt, 4), v(pWs), L_WSI + f * 1024))
    issue(0); issue(1)
    for n in range(10):
        ch, ks = steps[n]
        A.e('s_waitcnt lgkmcnt(%d)' % (5 if n < 9 else 0))
        D = D0 if ch == 0 else D1
        for tt in range(4):
            cc = '0' if ks == 0 else v(D + 4 * tt, 4)
            A.e('v_mfma_f32_16x16x32_bf16 %s, %s, %s, %s' % (v(D + 4 * tt, 4), v(Wb + 16 * (n & 1) + 4 * tt, 4), v(Bb + 4 * (n & 1), 4), cc))
        if n + 2 < 10:
            issue(n + 2)
    vo_ = T + 16
    A.e('v_bfe_u32 %s, %s, %s, 8' % (v(T), s(sNodes), v(cSh)))
    A.e('v_add_u32 %s, %s, %s' % (v(T + 1), s(sN0), v(T)))
    A.e('v_cmp_ne_u32 vcc, 0xff, %s' % v(T))
    A.e('v_lshl_add_u32 %s, %s, 9, %s' % (v(T + 1), v(T + 1), v(cOut)))
    A.e('s_nop 0')
    A.e('v_cndmask_b32 %s, %s, %s, vcc' % (v(vo_), v(cSign), v(T + 1)))
    A.e('s_nop 4')
    gt = acc
    for i in range(16):
        A.e('v_mul_f32 %s, %s, %s' % (v(gt + i), s(sNeg), v(D0 + i)))
    for i in range(16):
        A.e('v_exp_f32 %s, %s' % (v(gt + i), v(gt + i)))
    for i in range(16):
        A.e('v_add_f32 %s, 1.0, %s' % (v(gt + i), v(gt + i)))
    for i in range(16):
        A.e('v_rcp_f32 %s, %s' % (v(gt + i), v(gt + i)))
    for i in range(16):
        A.e('v_mul_f32 %s, %s, %s' % (v(gt + i), v(D1 + i), v(gt + i)))
    for i in range(16):
        A.e('v_cndmask_b32 %s, %s, %s, %s' % (v(gt + i), v(gt + i), v(D0 + i), s(sK0, 2)))
    for i in range(8):
        A.e('v_cvt_pk_bf16_f32 %s, %s, %s' % (v(T + i), v(gt + 2 * i), v(gt + 2 * i + 1)))
    ont = ' nt' if opt.outnt else ''
    A.e('buffer_store_dwordx4 %s, %s, %s, 0 offen%s' % (v(T, 4), v(vo_), s(sO, 4), ont))
    A.e('buffer_store_dwordx4 %s, %s, %s, 0 offen offset:64%s' % (v(T + 4, 4), v(vo_), s(sO, 4), ont))
    for i in range(44):
        A.e('v_mov_b32 %s, 0' % v(acc + i))
    A.e('s_cmp_ge_u32 %s, %s' % (s(sRho), s(sNq)))
    A.e('s_cbranch_scc1 M_END')
    A.e('v_readlane_b32 %s, %s, %s' % (s(sLeft), v(vQS), s(sRho)))
    A.e('s_nop 0')
    A.e('s_and_b32 %s, %s, 0x7fe' % (s(sLeft), s(sLeft)))
    A.e('s_cmp_eq_u32 %s, 0' % s(sLeft))
    A.e('s_cbranch_scc1 M_POST')
    A.e('s_setpc_b64 %s' % s(sRet, 2))
    A.label('M_SLOW')
    A.e('s_endpgm')
    A.label('M_END')
    A.e('s_endpgm')
    return dict(name=K, vgpr=nv + NA, accum=nv, sgpr=64, lds=L_END, block=512, grid=256)

def main():
    ap = argparse.ArgumentParser()
    ap.add_argument('-o', default='gather_scatter__tensor_product_equiv_equiformer__graph.s')
    ap.add_argument('--U', type=int, default=6)
    ap.add_argument('--k1nt', type=int, default=1)
    ap.add_argument('--outnt', type=int, default=0)
    opt = ap.parse_args()
    A = Asm()
    ks = []
    body = Asm()
    body.raw('.amdgcn_target "amdgcn-amd-amdhsa--gfx950"')
    body.raw('.text')
    ks.append(gen_prep(body, opt))
    ks.append(gen_main(body, opt))
    hdr = []
    for k in ks:
        hdr.append('; @launch kernel=%s grid=(%d,1,1) block=(%d,1,1) lds=%d' % (k['name'], k['grid'], k['block'], k['lds']))
    tail = ['.section .rodata,"a"']
    for k in ks:
        tail.append('.p2align 6')
        tail.append('.amdhsa_kernel %s' % k['name'])
        tail.append('  .amdhsa_next_free_vgpr %d' % k['vgpr'])
        tail.append('  .amdhsa_next_free_sgpr %d' % k['sgpr'])
        tail.append('  .amdhsa_accum_offset %d' % k.get('accum', (k['vgpr'] + 3) // 4 * 4))
        tail.append('  .amdhsa_group_segment_fixed_size 0')
        tail.append('  .amdhsa_kernarg_size 96')
        tail.append('  .amdhsa_user_sgpr_count 2')
        tail.append('  .amdhsa_user_sgpr_kernarg_segment_ptr 1')
        tail.append('  .amdhsa_system_sgpr_workgroup_id_x 1')
        tail.append('  .amdhsa_float_denorm_mode_32 3')
        tail.append('.end_amdhsa_kernel')
    open(opt.o, 'w').write('\n'.join(hdr) + '\n' + body.text() + '\n'.join(tail) + '\n')
    print('wrote', opt.o, [(k['name'], k['vgpr'], k.get('accum')) for k in ks])

if __name__ == '__main__':
    main()
```
